```python
import torch

def _softmax(x, axis=-1):
    return torch.softmax(x, dim=axis)
def _gelu(x):
    return torch.nn.functional.gelu(x, approximate="tanh")
def _silu(x):
    return torch.nn.functional.silu(x)
def _sigmoid(x):
    return torch.sigmoid(x)
def _layernorm(x, axis=-1, eps=1e-5):
    m = x.mean(dim=axis, keepdim=True)
    v = x.var(dim=axis, keepdim=True, unbiased=False)
    return (x - m) / torch.sqrt(v + eps)
def _scatter_add(tgt, idx, src, axis=0):
    return tgt.clone().index_add_(axis, idx, src)
def _segment_sum(src, seg, n):
    out = torch.zeros((n,) + src.shape[1:], dtype=src.dtype)
    return out.index_add_(0, seg, src)
def _pad(x, pw):
    flat = tuple(v for pair in reversed(pw) for v in pair)
    return torch.nn.functional.pad(x, flat)

kernel_name = 'sequential_preLN__grouped_kv_mqa__mixer_channel_mlp__prompt'

def setup_inputs():

    _w = (lambda a: (lambda t: t.to(torch.bfloat16) if t.is_floating_point() else t)(torch.as_tensor(a)))
    def _A_setup():
        B, S, D, H = 1, 2048, 640, 32
        Dh = D // H
        return {
            "x": _w((lambda *s: torch.randn(*s, dtype=torch.bfloat16) * 0.05)(B, S, D)),
            "wq": _w((lambda *s: torch.randn(*s, dtype=torch.bfloat16) * 0.05)(D, H * Dh)),
            "wk": _w((lambda *s: torch.randn(*s, dtype=torch.bfloat16) * 0.05)(D, Dh)),
            "wv": _w((lambda *s: torch.randn(*s, dtype=torch.bfloat16) * 0.05)(D, Dh)),
            "wo": _w((lambda *s: torch.randn(*s, dtype=torch.bfloat16) * 0.05)(H * Dh, D)),
        }
    _A_in = _A_setup()

    def _B_setup():
        B, S, D, F = 1, 2048, 640, 1728
        return {
            "x": _w((lambda *s: torch.randn(*s, dtype=torch.bfloat16) * 0.05)(B, S, D)),
            "w1": _w((lambda *s: torch.randn(*s, dtype=torch.bfloat16) * 3.2)(D, F) * (D ** -0.5)),
            "b1": _w((lambda *s: torch.randn(*s, dtype=torch.bfloat16) * 1.6)(F)),
            "w2": _w((lambda *s: torch.randn(*s, dtype=torch.bfloat16) * 0.2)(F, D) * (F ** -0.5)),
            "b2": _w((lambda *s: torch.randn(*s, dtype=torch.bfloat16) * 0.4)(D)),
        }
    _B_in = _B_setup()

    return {
        "A_x": _A_in["x"],
        "A_wq": _A_in["wq"],
        "A_wk": _A_in["wk"],
        "A_wv": _A_in["wv"],
        "A_wo": _A_in["wo"],
        "B_x": _B_in["x"],
        "B_w1": _B_in["w1"],
        "B_b1": _B_in["b1"],
        "B_w2": _B_in["w2"],
        "B_b2": _B_in["b2"],
    }

def reference(A_x, A_wq, A_wk, A_wv, A_wo, B_x, B_w1, B_b1, B_w2, B_b2):
    def _A_ref(x, wq, wk, wv, wo):
        B, S, D = x.shape
        H = 32
        Dh = D // H
        q = (lambda x, *d: x.permute(*d))((x @ wq).reshape(B, S, H, Dh), 0, 2, 1, 3)
        k = x @ wk
        v = x @ wv
        scores = torch.einsum("bhqd,bkd->bhqk", q, k) * (Dh ** -0.5)
        p = _softmax(scores, axis=-1)
        o = torch.einsum("bhqk,bkd->bhqd", p, v)
        return (lambda x, *d: x.permute(*d))(o, 0, 2, 1, 3).reshape(B, S, H * Dh) @ wo

    def _B_ref(x, w1, b1, w2, b2):
        y = _layernorm(x, axis=-1)
        h = _gelu(torch.einsum("bsd,df->bsf", y, w1) + b1)
        return torch.einsum("bsf,fd->bsd", h, w2) + b2

    x = A_x
    h = x + _A_ref(_layernorm(x, axis=-1), A_wq, A_wk, A_wv, A_wo)
    h2 = h + _B_ref(_layernorm(h, axis=-1), B_w1, B_b1, B_w2, B_b2)
    return h2
```

```python
import re

REG_RE = re.compile(r"^(-|abs\()?([vas])(?:(\d+)|\[(\d+):(\d+)\])\)?$")

def regs_of(tok):
    tok = tok.strip()
    if tok in ("vcc",): return {("s", 106), ("s", 107)}
    if tok == "vcc_lo": return {("s", 106)}
    if tok == "vcc_hi": return {("s", 107)}
    if tok == "exec": return {("s", 126), ("s", 127)}
    if tok == "exec_lo": return {("s", 126)}
    if tok == "exec_hi": return {("s", 127)}
    if tok == "m0": return {("s", 124)}
    tok2 = tok
    if tok2.startswith("|") and tok2.endswith("|"): tok2 = tok2[1:-1]
    if tok2.startswith("-|") and tok2.endswith("|"): tok2 = tok2[2:-1]
    m = REG_RE.match(tok2)
    if not m: return set()
    f = m.group(2)
    if m.group(3) is not None:
        return {(f, int(m.group(3)))}
    return {(f, i) for i in range(int(m.group(4)), int(m.group(5)) + 1)}

TRANS = ("v_exp_f32", "v_log_f32", "v_rcp_f32", "v_rsq_f32", "v_sqrt_f32", "v_sin_f32", "v_cos_f32", "v_exp_f16", "v_rcp_iflag_f32")
VCC = {("s", 106), ("s", 107)}

class Ins:
    def __init__(self, text):
        self.text = text
        t = text.split(";")[0].strip()
        self.is_label = t.endswith(":")
        self.is_dir = t.startswith(".") or t == ""
        self.mn = ""
        self.defs = set(); self.uses = set()
        self.kind = "other"
        if self.is_label or self.is_dir: return
        parts = t.split(None, 1)
        mn = parts[0]
        self.mn = mn
        rest = parts[1] if len(parts) > 1 else ""
        ops = []; cur = ""; d = 0
        for ch in rest:
            if ch == "[": d += 1
            if ch == "]": d -= 1
            if ch == "," and d == 0:
                ops.append(cur.strip()); cur = ""
            else: cur += ch
        if cur.strip(): ops.append(cur.strip())
        mods = ""
        if ops:
            last = ops[-1].split(None, 1)
            ops[-1] = last[0]
            mods = last[1] if len(last) > 1 else ""
        self.ops = ops; self.mods = mods
        R = [regs_of(o) for o in ops]
        U = lambda l: set().union(*l) if l else set()
        if mn.startswith("v_mfma"):
            self.kind = "mfma"
            self.defs = R[0]; self.A = R[1]; self.B = R[2]; self.C = R[3]
            self.uses = self.A | self.B | self.C
            self.passes = 8 if "32x32" in mn else (2 if "4x4" in mn else 4)
        elif mn.startswith("v_"):
            self.kind = "valu"
            base = re.sub(r"_(e32|e64|dpp|sdwa)$", "", mn)
            self.base = base
            self.trans = base in TRANS
            self.dpp = mn.endswith("_dpp") or "row_" in mods or "quad_perm" in mods
            self.dot = base.startswith("v_dot")
            self.permlane = base.startswith("v_permlane")
            self.laneread = base in ("v_readfirstlane_b32", "v_readlane_b32")
            self.defs = R[0]; self.uses = U(R[1:])
            if base.startswith(("v_fmac", "v_dot2c", "v_mac", "v_writelane")) or self.dpp: self.uses |= R[0]
            if self.permlane:
                self.defs = R[0] | R[1]; self.uses = R[0] | R[1]
            if base in ("v_add_co_u32", "v_sub_co_u32", "v_addc_co_u32", "v_subb_co_u32", "v_mad_u64_u32"):
                self.defs = R[0] | R[1]; self.uses = U(R[2:])
            if base == "v_cndmask_b32" and len(ops) == 3: self.uses |= VCC
            if base == "v_nop": self.defs = set()
        elif mn.startswith(("buffer_", "global_")):
            self.kind = "vmem"
            self.lds = (" lds" in (" " + mods)) or "load_lds" in mn
            self.store = "store" in mn or "atomic" in mn
            self.wide = mn.endswith(("x3", "x4"))
            if mn.startswith(("buffer_wbl2", "buffer_inv")):
                self.data = set()
            elif self.lds:
                self.uses = U(R) | {("s", 124)}; self.data = set()
            elif self.store:
                self.uses = U(R)
                self.data = R[0] if mn.startswith("buffer_") else R[1]
                if "atomic" in mn and "sc0" in mods: self.defs = R[0]
            else:
                self.defs = R[0]; self.uses = U(R[1:]); self.data = set()
        elif mn.startswith("ds_"):
            self.kind = "ds"
            if mn.startswith(("ds_read", "ds_bpermute", "ds_permute", "ds_swizzle")) or "_rtn" in mn:
                self.defs = R[0]; self.uses = U(R[1:])
            else:
                self.uses = U(R)
        elif mn.startswith("s_"):
            self.kind = "salu"
            if mn.startswith(("s_cmp", "s_bitcmp", "s_waitcnt", "s_nop", "s_barrier", "s_branch", "s_cbranch", "s_endpgm", "s_setprio", "s_sleep", "s_setpc")):
                self.uses = U(R)
            else:
                self.defs = R[0] if R else set(); self.uses = U(R[1:])
                if mn.startswith(("s_addk", "s_mulk")): self.uses |= R[0]
                if "saveexec" in mn: self.defs |= {("s", 126), ("s", 127)}
        self.states = 1
        if mn == "s_nop": self.states = int(ops[0], 0) + 1

def isv(r): return r[0] in ("v", "a")

def need(p, c):
    n = 0
    if p.kind == "valu":
        vd = {r for r in p.defs if isv(r)}
        sd = {r for r in p.defs if r[0] == "s"}
        if c.kind == "mfma" and vd & c.uses: n = max(n, 2)
        if c.kind == "valu":
            if p.trans and not c.trans and vd & c.uses: n = max(n, 1)
            if c.laneread and vd & c.uses: n = max(n, 1)
            if (c.permlane or c.dpp) and vd & c.uses: n = max(n, 2)
            if sd & c.uses: n = max(n, 4 if c.base in ("v_readlane_b32", "v_writelane_b32") else 2)
            if ("sdwa" in p.mn or ("op_sel" in p.mods and not p.base.startswith("v_pk_"))) and vd & (c.uses | c.defs): n = max(n, 1)
        if p.dot and vd & (c.uses | c.defs):
            same = c.kind == "valu" and c.base == p.base
            if same and not (vd & set().union(*[regs_of(o) for o in c.ops[1:3]])): pass
            else: n = max(n, 3)
        if c.kind == "vmem" and sd & c.uses: n = max(n, 5)
        if c.kind == "salu" and sd & c.uses: n = max(n, 1)
    if p.kind == "mfma":
        big = {2: 5, 4: 8, 8: 12}[p.passes]
        if c.kind == "mfma":
            if p.defs & (c.A | c.B): n = max(n, big)
            if p.defs & c.C:
                if p.defs == c.C and p.passes == c.passes: n = max(n, 2 if p.passes == 2 else 0)
                else: n = max(n, {2: 4, 4: 6, 8: 10}[p.passes])
            elif p.defs & c.defs and not (p.passes == c.passes):
                n = max(n, big)
        elif c.kind in ("valu", "vmem", "ds"):
            if p.defs & (c.uses | c.defs): n = max(n, big)
            if c.kind == "valu" and p.C & c.defs: n = max(n, {2: 1, 4: 3, 8: 7}[p.passes])
            if c.kind in ("vmem", "ds") and p.C & c.defs: n = max(n, {2: 1, 4: 3, 8: 7}[p.passes])
    if p.kind == "salu" and ("s", 124) in p.defs and c.kind == "vmem" and c.lds: n = max(n, 1)
    if p.kind == "vmem" and p.store and p.wide and p.data & c.defs:
        n = max(n, 2 if c.kind in ("valu", "mfma") else 1)
    return n

def worst(p):
    if p.kind == "mfma": return {2: 5, 4: 8, 8: 12}[p.passes]
    if p.kind == "valu": return 5 if any(r[0] == "s" for r in p.defs) else 3
    if p.kind == "vmem" and p.store and p.wide: return 2
    if p.kind == "salu" and ("s", 124) in p.defs: return 1
    return 0

class Kern:
    def __init__(self, name):
        self.name = name
        self.L = []
        self.nops = 0
    def i(self, text):
        for t in text.strip().split("\n"):
            t = t.strip()
            if t: self.L.append(t)
    def label(self, n): self.L.append(n + ":")
    def finish(self, verbose=False):
        out = []
        for t in self.L:
            c = Ins(t)
            if c.is_label or c.is_dir:
                out.append(c); continue
            req = 0; dist = 0
            isbr = c.mn.startswith(("s_branch", "s_cbranch", "s_setpc")) and "noflush" not in t
            for p in reversed(out):
                if p.is_label or p.is_dir: continue
                if dist >= 12: break
                n = need(p, c)
                if isbr: n = max(n, worst(p) - 1)
                req = max(req, n - dist)
                dist += p.states
            if req > 0:
                if verbose: print(f"[{self.name}] pad {req} before: {t}")
                self.nops += req
                out.append(Ins(f"s_nop {req-1}"))
            out.append(c)
        self.ins = out
        vmax = -1; amax = -1; smax = -1
        for c in out:
            for r in c.defs | c.uses:
                if r[0] == "v": vmax = max(vmax, r[1])
                if r[0] == "a": amax = max(amax, r[1])
                if r[0] == "s" and r[1] < 102: smax = max(smax, r[1])
        self.vmax, self.amax, self.smax = vmax, amax, smax
        body = "\n".join(("" if (c.is_label) else "    ") + c.text for c in out)
        acc = (vmax + 1 + 3) // 4 * 4
        nfv = acc + amax + 1 if amax >= 0 else vmax + 1
        self.nfv = nfv
        code = f""".text
.globl {self.name}
.p2align 8
.type {self.name},@function
{self.name}:
{body}
"""
        kd = f""".section .rodata,"a"
.p2align 6
.amdhsa_kernel {self.name}
  .amdhsa_next_free_vgpr {nfv}
  .amdhsa_next_free_sgpr {max(smax + 1, 16)}
  .amdhsa_accum_offset {acc}
  .amdhsa_group_segment_fixed_size 0
  .amdhsa_kernarg_size 104
  .amdhsa_user_sgpr_count 2
  .amdhsa_user_sgpr_kernarg_segment_ptr 1
  .amdhsa_system_sgpr_workgroup_id_x 1
.end_amdhsa_kernel
"""
        return code, kd

def vr(b, n=1, f="v"):
    return f"{f}{b}" if n == 1 else f"{f}[{b}:{b+n-1}]"
def ar(b, n=1): return vr(b, n, "a")
def sr(b, n=1): return vr(b, n, "s")

import struct
def f2u(x): return struct.unpack("<I", struct.pack("<f", x))[0]
def fhex(x): return hex(f2u(x))
```

```python
import sys, math
from asmlib import *

NAME = "sequential_preLN__grouped_kv_mqa__mixer_channel_mlp__prompt"
WS_Q, WS_KV, WS_KMAX, WS_ST, WS_CS = 0x0, 0x280000, 0x2B0000, 0x2C0000, 0x2E0000
WS_O, WS_H, WS_HH = 0x300000, 0x580000, 0x800000
WS_WO, WS_W1, WS_W2, WS_END = 0xEC0000, 0xF90000, 0x11C0000, 0x1400000
PAIR = 5248
XB = 2048 * 640 * 2
EPS = 1e-5
QS = (20 ** -0.5) * math.log2(math.e)
BT = 40.0
ONES = "0x3f803f80"

def srd(k, d, lo, size):
    k.i(f"""s_mov_b32 s{d}, s{lo}
    s_and_b32 s{d+1}, s{lo+1}, 0xffff
    s_mov_b32 s{d+2}, {hex(size)}
    s_mov_b32 s{d+3}, 0x20000""")

def code_prefetch(k, vtmp, vdst, sp, endlabel, n=1):
    here = f"PF_{k.name}"
    k.i(f"s_getpc_b64 s[{sp}:{sp+1}]")
    k.label(here)
    k.i(f"v_lshlrev_b32 v{vtmp}, 7, v0")
    for j in range(n):
        if j: k.i(f"v_add_u32 v{vtmp}, 0x8000, v{vtmp}")
        k.i(f"""v_min_u32 v{vdst+j}, {endlabel}-{here}-4, v{vtmp}
        global_load_dword v{vdst+j}, v{vdst+j}, s[{sp}:{sp+1}]""")

class VM:
    def __init__(self, k): self.k = k; self.q = []; self.done = -1
    def issue(self, text, tag=None):
        self.k.i(text); self.q.append(tag)
        assert len(self.q) - 1 - self.done <= 63, "too many outstanding"
    def count(self, tag):
        idx = max(i for i, t in enumerate(self.q) if t == tag)
        return len(self.q) - 1 - idx
    def wait(self, tag):
        n = self.count(tag)
        idx = len(self.q) - 1 - n
        if idx <= self.done: return
        self.done = idx
        self.k.i(f"s_waitcnt vmcnt({n})")

def xsum_g(k, v, t, op="v_add_f32"):
    k.i(f"""v_mov_b32 v{t}, v{v}
    v_permlane16_swap_b32 v{v}, v{t}
    {op} v{v}, v{v}, v{t}
    v_mov_b32 v{t}, v{v}
    v_permlane32_swap_b32 v{v}, v{t}
    {op} v{v}, v{v}, v{t}""")

def rowmax16(k, v):
    for n in (8, 4, 2, 1):
        k.i(f"v_max_f32_dpp v{v}, v{v}, v{v} row_ror:{n} row_mask:0xf bank_mask:0xf")

def gen_k1():
    k = Kern("k1_qkv_kernel")
    EOFF = 102400
    X, WQ, WE, WS = 16, 20, 24, 28
    sW, sCB, sTOK0, sT, sT2 = 32, 33, 34, 35, 36
    vL, vXO, vT, vT2, vT3 = 1, 2, 3, 4, 5
    vD = 6
    vR0, vR1, vE0, vE1 = 11, 12, 13, 14
    vSQ = 15
    vONE = 16
    vSUM = 20
    ACC = 24
    CS = 52
    FB = 80
    XF = 96
    k.i("""s_load_dwordx4 s[4:7], s[0:1], 0
    s_load_dwordx4 s[8:11], s[0:1], 16
    s_load_dwordx2 s[12:13], s[0:1], 96
    s_cmp_ge_u32 s2, 256
    s_cbranch_scc1 K1_END""")
    code_prefetch(k, vT, 176, 14, 'HOT_END', 2)
    k.i(f"""v_lshrrev_b32 v{vT}, 6, v0
    v_and_b32 v{vL}, 63, v0
    v_readfirstlane_b32 s{sW}, v{vT}
    s_and_b32 s{sT}, s2, 7
    s_lshr_b32 s{sT2}, s2, 3
    s_and_b32 s{sCB}, s{sT2}, 7
    s_lshr_b32 s{sT2}, s{sT2}, 3
    s_lshl_b32 s{sT}, s{sT}, 2
    s_add_u32 s37, s{sT}, s{sT2}            ; rb
    s_lshl_b32 s{sTOK0}, s37, 6
    s_lshl_b32 s{sT}, s{sW}, 4
    s_add_u32 s{sTOK0}, s{sTOK0}, s{sT}
    v_and_b32 v{vT}, 15, v{vL}
    v_lshrrev_b32 v{vT2}, 4, v{vL}
    v_mul_u32_u24 v{vXO}, 1280, v{vT}
    v_lshl_add_u32 v{vXO}, v{vT2}, 4, v{vXO}""")
    for b in range(5):
        k.i(f"""v_add_u32 v{vT}, {64*b}, v{vL}
        v_mul_u32_u24 v{vT2}, 6554, v{vT}
        v_lshrrev_b32 v{vT2}, 16, v{vT2}          ; rho
        v_mul_u32_u24 v{vT3}, 10, v{vT2}
        v_sub_u32 v{vT}, v{vT}, v{vT3}            ; c16
        v_bfe_u32 v{vT3}, v{vT2}, 2, 2            ; g
        v_lshlrev_b32 v{vT3}, 3, v{vT3}
        v_and_b32 v{vD+b}, 3, v{vT2}
        v_add_u32 v{vT3}, v{vT3}, v{vD+b}
        v_lshrrev_b32 v{vT2}, 4, v{vT2}
        v_lshl_add_u32 v{vT3}, v{vT2}, 2, v{vT3}  ; k row
        v_mul_u32_u24 v{vT3}, 1280, v{vT3}
        v_lshl_add_u32 v{vD+b}, v{vT}, 4, v{vT3}""")
    k.i(f"""s_mul_i32 s38, s{sTOK0}, 1280          ; x soffset
    s_mul_i32 s39, s{sW}, {32*1280}
    s_mul_i32 s{sT}, s{sCB}, 160
    s_add_u32 s39, s39, s{sT}
    s_mul_i32 s40, s{sW}, 5120
    v_lshlrev_b32 v{vT}, 4, v0
    s_lshl_b32 s41, s{sW}, 10
    s_add_u32 s41, s41, {EOFF}
    s_waitcnt lgkmcnt(0)""")
    srd(k, X, 4, XB)
    srd(k, WQ, 6, 640 * 640 * 2)
    k.i(f"""s_cmp_eq_u32 s{sCB}, 0
    s_cselect_b32 s8, s8, s10
    s_cselect_b32 s9, s9, s11""")
    srd(k, WE, 8, 640 * 20 * 2)
    srd(k, WS, 12, WS_END)
    k.i(f"""s_cmp_ge_u32 s{sCB}, 2
    s_cbranch_scc1 K1_NOE ; noflush""")
    for j in range(7):
        k.i(f"""s_add_u32 m0, s41, {j*4096}
        s_mov_b32 s{sT}, {j*4096}
        buffer_load_dwordx4 v{vT}, s[{WE}:{WE+3}], s{sT} offen lds""")
    k.label("K1_NOE")
    for c in range(5):
        for j in range(4):
            ks = 4 * c + j
            k.i(f"buffer_load_dwordx4 {vr(XF+4*ks,4)}, v{vXO}, s[{X}:{X+3}], s38 offen offset:{ks*64}")
        k.i(f"s_mov_b32 m0, s40")
        for b in range(5):
            k.i(f"buffer_load_dwordx4 v{vD+b}, s[{WQ}:{WQ+3}], s39 offen lds")
            if b < 4: k.i("s_addk_i32 m0, 1024")
        if c < 4:
            k.i(f"""s_add_u32 s39, s39, {128*1280}
            s_add_u32 s40, s40, 20480""")
    k.i(f"""v_lshrrev_b32 v{vT}, 2, v{vL}
    v_and_b32 v{vT2}, 3, v{vL}
    v_mul_u32_u24 v{vR0}, 160, v{vT}
    v_lshl_add_u32 v{vR0}, v{vT2}, 3, v{vR0}
    v_add_u32 v{vR1}, 61440, v{vR0}
    v_lshrrev_b32 v{vT3}, 4, v{vL}
    v_and_b32 v{vT}, 3, v{vT}
    v_lshl_add_u32 v{vT}, v{vT3}, 3, v{vT}      ; 8g + r
    v_mul_u32_u24 v{vT}, 40, v{vT}
    v_add_u32 v{vE1}, {EOFF + 32}, v{vT}
    v_lshl_add_u32 v{vE0}, v{vT2}, 3, v{vT}
    v_add_u32 v{vE0}, {EOFF}, v{vE0}
    v_mov_b32 v{vSQ}, 0""")
    for j in range(4): k.i(f"v_mov_b32 v{vONE+j}, {ONES}")
    for j in range(vSUM, FB): k.i(f"v_mov_b32 v{j}, 0")

    def stream(frs):
        n = len(frs)
        def rd(f):
            b, off, qs, s, ks = frs[f]
            fb = FB + 4 * (f % 4)
            k.i(f"ds_read_b64_tr_b16 {vr(fb,2)}, v{b} offset:{off}")
            k.i(f"ds_read_b64_tr_b16 {vr(fb+2,2)}, v{b} offset:{off+qs}")
        for f in range(min(3, n)): rd(f)
        for f in range(n):
            if f + 3 < n: rd(f + 3)
            k.i(f"s_waitcnt lgkmcnt({2*min(3, n-1-f)})")
            b, off, qs, s, ks = frs[f]
            fb = FB + 4 * (f % 4)
            k.i(f"v_mfma_f32_16x16x32_bf16 {vr(ACC+4*s,4)}, {vr(fb,4)}, {vr(XF+4*ks,4)}, {vr(ACC+4*s,4)}")
            if s < 4: k.i(f"v_dot2c_f32_bf16 v{vSQ}, v{XF+4*ks+s}, v{XF+4*ks+s}")
            k.i(f"v_mfma_f32_16x16x32_bf16 {vr(CS+4*s,4)}, {vr(fb,4)}, {vr(vONE,4)}, {vr(CS+4*s,4)}")
            if s == 4: k.i(f"v_mfma_f32_16x16x32_bf16 {vr(vSUM,4)}, {vr(vONE,4)}, {vr(XF+4*ks,4)}, {vr(vSUM,4)}")
    for c in range(5):
        k.i(f"""s_waitcnt vmcnt({(4-c)*9})
        s_barrier""")
        frs = []
        for j in range(4):
            ks = 4 * c + j
            for s in range(5):
                if ks < 12: frs.append((vR0, ks * 5120 + s * 32, 2560, s, ks))
                else: frs.append((vR1, (ks - 12) * 5120 + s * 32, 2560, s, ks))
        stream(frs)
        k.i(f"""s_cmp_ge_u32 s{sCB}, 2
        s_cbranch_scc1 K1_SK{c} ; noflush""")
        frs = []
        for j in range(4):
            ks = 4 * c + j
            frs.append((vE0, ks * 1280, 160, 5, ks))
            frs.append((vE1, ks * 1280, 160, 6, ks))
        stream(frs)
        k.label(f"K1_SK{c}")
    vM, vRS, vRQ, vA = 6, 7, 8, 9
    k.i("s_nop 7")
    xsum_g(k, vSQ, vT)
    k.i(f"""v_mul_f32 v{vM}, {fhex(1/640)}, v{vSUM}
    v_mul_f32 v{vT}, v{vM}, v{vM}
    v_mov_b32 v{vT2}, {fhex(1/640)}
    v_fma_f32 v{vT}, v{vSQ}, v{vT2}, -v{vT}
    v_max_f32 v{vT}, 0, v{vT}
    v_add_f32 v{vT}, {fhex(EPS)}, v{vT}
    v_rsq_f32 v{vRS}, v{vT}
    v_and_b32 v{vT2}, 15, v{vL}
    v_lshrrev_b32 v{vT3}, 4, v{vL}
    v_mul_f32 v{vRQ}, {fhex(QS)}, v{vRS}
    v_mul_u32_u24 v{vA}, 1280, v{vT2}
    v_lshl_add_u32 v{vA}, v{vT3}, 3, v{vA}
    s_mul_i32 s{sT}, s{sCB}, 160
    s_add_u32 s38, s38, s{sT}""")
    def finish_sub(s, scale):
        for r in range(4):
            k.i(f"v_fma_f32 v{ACC+4*s+r}, -v{vM}, v{CS+4*s+r}, v{ACC+4*s+r}")
        for r in range(4):
            k.i(f"v_mul_f32 v{ACC+4*s+r}, v{ACC+4*s+r}, v{scale}")
        k.i(f"""v_cvt_pk_bf16_f32 v{CS+4*s}, v{ACC+4*s}, v{ACC+4*s+1}
        v_cvt_pk_bf16_f32 v{CS+4*s+1}, v{ACC+4*s+2}, v{ACC+4*s+3}""")
    k.i(f"""s_cmp_ge_u32 s{sCB}, 2
    s_cbranch_scc1 K1_Q""")
    finish_sub(5, vRS); finish_sub(6, vRS)
    k.i(f"""s_mul_i32 s42, s37, {PAIR}
    s_add_u32 s42, s42, {WS_KV}
    s_cmp_eq_u32 s{sCB}, 1
    s_cbranch_scc1 K1_V""")
    a, b = CS + 20, CS + 24
    k.i(f"""s_lshr_b32 s{sT}, s{sW}, 1
    s_and_b32 s{sT2}, s{sW}, 1
    s_lshl_b32 s{sT2}, s{sT2}, 8            ; (w&1)*16 keys *16B
    s_add_u32 s42, s42, s{sT2}
    s_lshl_b32 s43, s{sT}, 10
    s_add_u32 s43, s43, s42
    s_lshl_b32 s44, s{sT}, 3
    s_add_u32 s44, s44, s42
    v_lshlrev_b32 v10, 4, v{vT2}            ; key*16
    v_lshrrev_b32 v11, 1, v{vT3}
    v_lshl_add_u32 v11, v11, 9, v10
    v_and_b32 v12, 1, v{vT3}
    v_lshl_add_u32 v11, v12, 3, v11
    buffer_store_dwordx2 {vr(a,2)}, v11, s[{WS}:{WS+3}], s43 offen
    buffer_store_dwordx2 {vr(b,2)}, v10, s[{WS}:{WS+3}], s44 offen offset:2048
    v_mov_b32 v13, 0
    v_mov_b32 v14, 0
    v_dot2c_f32_bf16 v13, v{a}, v{a}
    v_dot2c_f32_bf16 v14, v{b}, v{b}
    v_dot2c_f32_bf16 v13, v{a+1}, v{a+1}
    v_dot2c_f32_bf16 v14, v{b+1}, v{b+1}""")
    xsum_g(k, 13, 12)
    k.i("v_add_f32 v13, v13, v14")
    rowmax16(k, 13)
    k.i(f"""s_lshl_b32 s{sT}, s37, 2
    s_add_u32 s{sT}, s{sT}, s{sW}
    s_lshl_b32 s{sT}, s{sT}, 2
    s_add_u32 s{sT}, s{sT}, {WS_KMAX}
    v_mov_b32 v12, 0
    buffer_store_dword v13, v12, s[{WS}:{WS+3}], s{sT} offen
    s_branch K1_Q""")
    k.label("K1_V")
    k.i(f"""s_mul_i32 s{sT}, s{sW}, 672
    s_add_u32 s42, s42, s{sT}
    v_bfe_u32 v10, v{vT2}, 2, 1             ; hi
    v_mul_u32_u24 v10, {21*16}, v10
    v_and_b32 v11, 3, v{vT2}
    v_lshrrev_b32 v12, 3, v{vT2}
    v_lshl_add_u32 v11, v12, 2, v11         ; j
    v_lshl_add_u32 v10, v11, 1, v10         ; hi*336 + j*2
    v_lshl_add_u32 v11, v{vT3}, 6, v10      ; + 4g*16""")
    for r in range(4):
        op = "buffer_store_short_d16_hi" if r & 1 else "buffer_store_short"
        k.i(f"{op} v{a + r//2}, v11, s[{WS}:{WS+3}], s42 offen offset:{2560 + r*16}")
    for r in range(4):
        op = "buffer_store_short_d16_hi" if r & 1 else "buffer_store_short"
        k.i(f"{op} v{b + r//2}, v10, s[{WS}:{WS+3}], s42 offen offset:{2560 + (16+r)*16}")
    k.i(f"buffer_store_short v{vONE}, v10, s[{WS}:{WS+3}], s42 offen offset:{2560 + 20*16}")
    k.label("K1_Q")
    for s in range(5):
        finish_sub(s, vRQ)
        k.i(f"buffer_store_dwordx2 {vr(CS+4*s,2)}, v{vA}, s[{WS}:{WS+3}], s38 offen offset:{s*32}")
    k.label("K1_END")
    k.i("s_endpgm")
    return k, 131072

def gen_k2():
    k = Kern("k2_attn_kernel")
    vm = VM(k)
    OS, QL, FL, MX, PSC = 0, 98304, 110592, 110848, 119040
    LDS = 160000
    PS, WS = 24, 28
    sW, sTOKB, sT, sT2, sT3 = 32, 33, 34, 35, 36
    sKV, sPITCH, sNS, sKS, sDST, sKS0, sNB, sDKS, sDNB, sMAG = 37, 38, 39, 40, 41, 42, 43, 44, 45, 46
    sSRC, sDO, sCSO, sQI = 48, 54, 60, 61
    sP16 = 62
    vL, vT, vT2, vT3 = 1, 2, 3, 4
    vK1, vK2, vV = 5, 6, 7
    vQ1, vQ2 = 8, 9
    vOSL, vQA, vPD, vPR, vHM = 10, 11, 12, 13, 14
    vKM = 16
    Q = 18
    QB = 24
    S = [32, 48]
    P = [64, 72]
    OA, OB = 80, 96
    PF = 112
    PC = 132
    ONE = 136
    FLG = 140
    RB = 144
    aK1, aK2, aV = 0, 64, 96
    k.i("""s_load_dwordx2 s[12:13], s[0:1], 96
    s_load_dwordx2 s[4:5], s[0:1], 32
    s_load_dwordx2 s[6:7], s[0:1], 48
    s_load_dwordx2 s[8:9], s[0:1], 64
    s_cmp_ge_u32 s2, 256
    s_cbranch_scc1 K2_END""")
    code_prefetch(k, vT, 250, 14, "HOT_END", 1); vm.q.append("code")
    k.i(f"""v_lshrrev_b32 v{vT}, 6, v0
    v_and_b32 v{vL}, 63, v0
    v_readfirstlane_b32 s{sW}, v{vT}
    s_and_b32 s{sT}, s2, 7
    s_lshr_b32 s{sT2}, s2, 3
    s_lshl_b32 s{sT}, s{sT}, 5
    s_add_u32 s{sTOKB}, s{sT}, s{sT2}
    s_lshl_b32 s{sTOKB}, s{sTOKB}, 3
    v_and_b32 v{vT}, 31, v{vL}
    v_lshrrev_b32 v{vT2}, 5, v{vL}           ; hi
    v_lshlrev_b32 v{vK1}, 4, v{vL}
    v_cmp_lt_u32 vcc, 31, v{vL}
    v_mov_b32 v{vT3}, {2560 + 320 - 2048}
    v_cndmask_b32 v{vK2}, v{vK1}, v{vT3}, vcc
    v_min_u32 v{vV}, 20, v{vT}
    v_mad_u32_u24 v{vV}, v{vT2}, 21, v{vV}
    v_lshlrev_b32 v{vV}, 4, v{vV}
    v_mul_u32_u24 v{vQ1}, 40, v{vT}
    v_mov_b32 v{vT3}, 0x7f000000
    v_cndmask_b32 v{vQ2}, v{vQ1}, v{vT3}, vcc
    v_lshl_add_u32 v{vQ1}, v{vT2}, 4, v{vQ1}
    v_cndmask_b32 v{vHM}, 0, -1, vcc
    v_lshlrev_b32 v{vT3}, 3, v{vL}
    s_lshl_b32 s{sT}, s{sW}, 1
    s_add_u32 s{sT}, s{sT}, s{sTOKB}
    s_mul_i32 s{sT}, s{sT}, 1280
    s_mul_i32 s{sKV}, s{sW}, {8*PAIR}
    s_add_u32 s{sKV}, s{sKV}, {WS_KV}
    s_mov_b32 s{sT2}, {WS_KMAX}
    s_waitcnt lgkmcnt(0)""")
    srd(k, WS, 12, WS_END)
    ws = f"s[{WS}:{WS+3}]"
    vm.issue(f"buffer_load_dwordx2 {vr(vKM,2)}, v{vT3}, {ws}, s{sT2} offen", "q")
    vm.issue(f"buffer_load_dwordx4 {vr(Q,4)}, v{vQ1}, {ws}, s{sT} offen", "q")
    vm.issue(f"buffer_load_dwordx2 {vr(Q+4,2)}, v{vQ2}, {ws}, s{sT} offen offset:32", "q")
    vm.issue(f"buffer_load_dwordx4 {vr(QB,4)}, v{vQ1}, {ws}, s{sT} offen offset:1280", "q")
    vm.issue(f"buffer_load_dwordx2 {vr(QB+4,2)}, v{vQ2}, {ws}, s{sT} offen offset:1312", "q")
    for p in range(8):
        t0, t1 = 2 * p, 2 * p + 1
        k.i(f"s_add_u32 s{sT2}, s{sKV}, 2560")
        vm.issue(f"buffer_load_dwordx4 {ar(aK1+4*t0,4)}, v{vK1}, {ws}, s{sKV} offen", None)
        vm.issue(f"buffer_load_dwordx4 {ar(aK2+4*p,4)}, v{vK2}, {ws}, s{sKV} offen offset:2048", ("k", t0))
        vm.issue(f"buffer_load_dwordx4 {ar(aK1+4*t1,4)}, v{vK1}, {ws}, s{sKV} offen offset:1024", ("k", t1))
        for f in range(4):
            vm.issue(f"buffer_load_dwordx4 {ar(aV+16*p+4*f,4)}, v{vV}, {ws}, s{sT2} offen offset:{672*f}", ("v", t0 + f // 2))
        if p < 7: k.i(f"s_add_u32 s{sKV}, s{sKV}, {PAIR}")
    k.i(f"""s_mov_b32 s{sPITCH}, 1280
    s_mov_b32 s{sNS}, 5
    s_mov_b32 s{sKS}, 20
    s_mov_b32 s{sDKS}, 1
    s_mov_b32 s{sDNB}, 0
    s_mov_b32 s{sMAG}, {(2**32 + 4) // 5}
    s_mov_b32 s{sDST}, {WS_WO}
    s_mov_b32 s26, {640*640*2}
    s_mov_b32 s{sT3}, s2
    s_cmp_lt_u32 s2, 40
    s_cbranch_scc1 K2_P1
    s_mov_b32 s26, {640*1728*2}
    s_cmp_ge_u32 s2, 148
    s_cbranch_scc1 K2_P2
    s_mov_b64 s[4:5], s[6:7]
    s_mov_b32 s{sPITCH}, 3456
    s_mov_b32 s{sNS}, 7
    s_mov_b32 s{sMAG}, {(2**32 + 6) // 7}
    s_mov_b32 s{sDST}, {WS_W1}
    s_sub_u32 s{sT3}, s2, 40""")
    k.label("K2_P1")
    k.i(f"""s_lshr_b32 s{sNB}, s{sT3}, 2
    s_and_b32 s{sKS0}, s{sT3}, 3
    s_mul_i32 s{sKS0}, s{sKS0}, 5
    s_branch K2_P3""")
    k.label("K2_P2")
    k.i(f"""s_mov_b64 s[4:5], s[8:9]
    s_mov_b32 s{sKS}, 54
    s_mov_b32 s{sDKS}, 0
    s_mov_b32 s{sDNB}, 1
    s_mov_b32 s{sDST}, {WS_W2}
    s_sub_u32 s{sT3}, s2, 148
    s_lshr_b32 s{sKS0}, s{sT3}, 1
    s_and_b32 s{sNB}, s{sT3}, 1
    s_mul_i32 s{sNB}, s{sNB}, 5""")
    k.label("K2_P3")
    k.i(f"""s_mov_b32 s24, s4
    s_and_b32 s25, s5, 0xffff
    s_mov_b32 s27, 0x20000
    s_lshl_b32 s{sP16}, s{sPITCH}, 4""")
    for e in range(5):
        k.i(f"""s_lshl_b32 s{sT}, s{sKS0}, 5
        s_mul_i32 s{sT}, s{sT}, s{sPITCH}
        s_lshl_b32 s{sT2}, s{sNB}, 7
        s_add_u32 s{sT}, s{sT}, s{sT2}
        s_lshr_b32 s{sT2}, s{sW}, 1
        s_lshl_b32 s{sT2}, s{sT2}, 6
        s_add_u32 s{sSRC+e}, s{sT}, s{sT2}
        s_lshl_b32 s{sT}, s{sNB}, 2
        s_add_u32 s{sT}, s{sT}, s{sW}             ; subtile
        s_mul_hi_u32 s{sT2}, s{sT}, s{sMAG}       ; cb
        s_mul_i32 s47, s{sT2}, s{sNS}
        s_sub_u32 s{sT}, s{sT}, s47               ; rem
        s_cmp_eq_u32 s{sT}, 0
        s_cselect_b32 s47, s{sNS}, s{sT}
        s_sub_u32 s47, s47, 1
        s_bitcmp1_b32 s{sT2}, 0
        s_cselect_b32 s{sT}, s47, s{sT}           ; pos""")
        if e == 0:
            k.i(f"""s_mul_i32 s47, s{sT2}, 7
            s_add_u32 s47, s47, s{sT}
            s_lshl_b32 s47, s47, 6
            s_and_b32 s{sCSO}, s{sT3}, 3
            s_mul_i32 s{sCSO}, s{sCSO}, 7168
            s_add_u32 s{sCSO}, s{sCSO}, s47
            s_cmp_eq_u32 s{sNS}, 7
            s_cselect_b32 s{sCSO}, s{sCSO}, 0x8000
            s_add_u32 s{sCSO}, s{sCSO}, {WS_CS}""")
        k.i(f"""s_mul_i32 s{sT2}, s{sT2}, s{sKS}
        s_add_u32 s{sT2}, s{sT2}, s{sKS0}
        s_mul_i32 s{sT2}, s{sT2}, s{sNS}
        s_add_u32 s{sT2}, s{sT2}, s{sT}
        s_lshl_b32 s{sT2}, s{sT2}, 10
        s_add_u32 s{sDO+e}, s{sT2}, s{sDST}
        s_add_u32 s{sKS0}, s{sKS0}, s{sDKS}
        s_add_u32 s{sNB}, s{sNB}, s{sDNB}""")
    k.i(f"""v_lshrrev_b32 v{vT}, 2, v{vL}
    v_and_b32 v{vT2}, 3, v{vL}
    v_mul_lo_u32 v{vPD}, v{vT}, s{sPITCH}
    v_lshl_add_u32 v{vPD}, v{vT2}, 4, v{vPD}
    v_lshrrev_b32 v{vT3}, 4, v{vL}
    v_and_b32 v{vT}, 3, v{vT}
    v_lshl_add_u32 v{vT}, v{vT3}, 3, v{vT}        ; 8g + r
    v_lshlrev_b32 v{vT}, 6, v{vT}
    v_lshl_add_u32 v{vPR}, v{vT2}, 4, v{vT}
    s_mul_i32 s47, s{sW}, 10240
    s_add_u32 s47, s47, {PSC}
    s_and_b32 s{sT}, s{sW}, 1
    s_lshl_b32 s{sT}, s{sT}, 3
    s_add_u32 s{sT}, s{sT}, s47
    v_add_u32 v{vPR}, s{sT}, v{vPR}
    s_mul_i32 s{sT}, s{sW}, 24576
    v_add_u32 v{vOSL}, s{sT}, v{vK1}
    s_mul_i32 s{sQI}, s{sW}, 3072
    v_mov_b32 v{ONE}, {ONES}
    v_mov_b32 v{ONE+1}, {ONES}
    v_mov_b32 v{ONE+2}, {ONES}
    v_mov_b32 v{ONE+3}, {ONES}
    v_mov_b32 v{FLG}, 0
    v_mov_b32 v{FLG+1}, 0""")
    vm.wait("q")
    k.i(f"v_max_f32 v{vKM}, v{vKM}, v{vKM+1}")
    for j in range(6):
        k.i(f"""v_dot2c_f32_bf16 v{FLG}, v{Q+j}, v{Q+j}
        v_dot2c_f32_bf16 v{FLG+1}, v{QB+j}, v{QB+j}""")
    rowmax16(k, vKM)
    xsum_g(k, vKM, vT, "v_max_f32")
    k.i(f"""v_mov_b32 v{vT}, v{FLG}
    v_mov_b32 v{vT2}, v{FLG+1}
    v_permlane32_swap_b32 v{FLG}, v{vT}
    v_permlane32_swap_b32 v{FLG+1}, v{vT2}
    v_add_f32 v{FLG}, v{FLG}, v{vT}
    v_add_f32 v{FLG+1}, v{FLG+1}, v{vT2}
    v_mul_f32 v{FLG}, v{FLG}, v{vKM}
    v_mul_f32 v{FLG+1}, v{FLG+1}, v{vKM}
    v_sqrt_f32 v{FLG}, v{FLG}
    v_sqrt_f32 v{FLG+1}, v{FLG+1}
    s_mov_b32 s{sT}, {fhex(BT)}
    v_add_u32 v{vT}, 0x1ffff, v{FLG}
    v_add_u32 v{vT2}, 0x1ffff, v{FLG+1}
    v_cmp_nge_f32 vcc, s{sT}, v{FLG}
    v_cmp_nge_f32 s[14:15], s{sT}, v{FLG+1}
    v_lshrrev_b32 v{vT}, 16, v{vT}
    v_lshrrev_b32 v{vT2}, 16, v{vT2}
    v_or_b32 v{vT}, 0x8000, v{vT}
    v_or_b32 v{vT2}, 0x8000, v{vT2}
    v_and_or_b32 v{Q+4}, v{vT}, v{vHM}, v{Q+4}
    v_and_or_b32 v{QB+4}, v{vT2}, v{vHM}, v{QB+4}
    s_or_b64 s[14:15], s[14:15], vcc
    s_or_b32 s14, s14, s15
    v_add_u32 v{vQ1}, {QL}, v{vK1}
    v_lshlrev_b32 v{vQ2}, 3, v{vL}
    v_add_u32 v{vQ2}, {QL + 1024}, v{vQ2}""")

    def qk1(t, sb): return f"v_mfma_f32_32x32x16_bf16 {vr(S[sb],16)}, {ar(aK1+4*t,4)}, {vr(Q,4)}, 0"
    def qk2(t, sb): return f"v_mfma_f32_32x32x8_bf16 {vr(S[sb],16)}, {ar(aK2+2*t,2)}, {vr(Q+4,2)}, {vr(S[sb],16)}"
    def pv(t, h):
        d = OA if t < 8 else OB
        c = vr(d, 16)
        if h == 0 and t == 0: c = "0"
        if h == 0 and t == 8: c = vr(OA, 16)
        return f"v_mfma_f32_32x32x16_bf16 {vr(d,16)}, {ar(aV+8*t+4*h,4)}, {vr(P[t&1]+4*h,4)}, {c}"
    def ex(t, r): return f"v_exp_f32 v{S[t&1]+r}, v{S[t&1]+r}"
    def cv(t, j): return f"v_cvt_pk_bf16_f32 v{P[t&1]+j}, v{S[t&1]+2*j}, v{S[t&1]+2*j+1}"

    vm.wait(("k", 0))
    k.i(qk1(0, 0)); k.i(qk2(0, 0))
    k.i(f"""v_add_u32 v{vT}, s{sQI}, v{vQ1}
    v_add_u32 v{vT2}, s{sQI}, v{vQ2}
    ds_write_b128 v{vT}, {vr(Q,4)}
    ds_write_b64 v{vT2}, {vr(Q+4,2)}
    ds_write_b128 v{vT}, {vr(QB,4)} offset:1536
    ds_write_b64 v{vT2}, {vr(QB+4,2)} offset:1536
    s_lshl_b32 s{sT}, s{sW}, 2
    s_add_u32 s{sT}, s{sT}, {FL}
    v_mov_b32 v{vT}, s{sT}
    v_mov_b32 v{vT2}, s14
    ds_write_b32 v{vT}, v{vT2}
    v_mov_b32 v{vT3}, {FL}""")

    prep_issue = []
    for e in range(5):
        prep_issue.append([f"s_add_u32 m0, s47, {e*2048}", f"s_add_u32 s{sT}, s{sSRC+e}, s{sP16}",
                           ("vm", f"buffer_load_dwordx4 v{vPD}, s[{PS}:{PS+3}], s{sSRC+e} offen lds", "prep")])
        prep_issue.append([f"s_addk_i32 m0, 1024", "s_nop 0",
                           ("vm", f"buffer_load_dwordx4 v{vPD}, s[{PS}:{PS+3}], s{sT} offen lds", "prep")])
    def prep_reads():
        L = []
        for e in range(5):
            L.append(f"ds_read_b64_tr_b16 {vr(PF+4*e,2)}, v{vPR} offset:{e*2048}")
            L.append(f"ds_read_b64_tr_b16 {vr(PF+4*e+2,2)}, v{vPR} offset:{e*2048+256}")
        return L
    def prep_out():
        L = []
        for e in range(5):
            L.append(("vm", f"buffer_store_dwordx4 {vr(PF+4*e,4)}, v{vK1}, {ws}, s{sDO+e} offen sc1", "pst"))
            L.append(f"v_mfma_f32_16x16x32_bf16 {vr(PC,4)}, {vr(PF+4*e,4)}, {vr(ONE,4)}, {'0' if e == 0 else vr(PC,4)}")
        return L
    cs_out = [f"v_and_b32 v{vT}, 48, v{vL}", ("vm", f"buffer_store_dwordx4 {vr(PC,4)}, v{vT}, {ws}, s{sCSO} offen sc1", "pst")]

    def side(items):
        for it in items:
            if isinstance(it, tuple):
                if it[0] == "vm": vm.issue(it[1], it[2])
                elif it[0] == "wait": vm.wait(it[1])
            else: k.i(it)

    NT = 8
    for i in range(NT):
        for t in range(16):
            first = (i == 0 and t == 0)
            last = (i == NT - 1 and t == 15)
            tp = (t - 1) % 16; tn = (t + 1) % 16
            sj = [[], [], [], []]
            if i == 0:
                if t >= 1: sj[0].append(("wait", ("v", tp)))
                if t < 15: sj[1].append(("wait", ("k", tn)))
                if 3 <= t < 13: sj[3] += prep_issue[t - 3]
                if t == 8: sj[2] += ["s_waitcnt lgkmcnt(0)", "s_barrier", f"ds_read_b128 {vr(FLG,4)}, v{vT3}"]
                if t == 10: sj[2] += ["s_waitcnt lgkmcnt(0)", f"v_or3_b32 v{FLG}, v{FLG}, v{FLG+1}, v{FLG+2}", f"v_or_b32 v{FLG}, v{FLG}, v{FLG+3}",
                                      f"v_cmp_ne_u32 vcc, 0, v{FLG}", "s_cbranch_vccnz K2_FALLBACK ; noflush"]
            if i == 1 and t == 0: sj[0].append(("wait", ("v", 15)))
            if i >= 1 and t == 2:
                for q in range(3): sj[q].append(f"ds_write_b128 v{vOSL}, {vr(OB+4*q,4)} offset:{(i-1)*3072+q*1024}")
            if i == 2:
                R = prep_reads(); O_ = prep_out()
                if t == 4: sj[0].append(("wait", "prep"))
                if 4 <= t < 7:
                    for g in range(4):
                        n = (t - 4) * 4 + g
                        if n < 10: sj[g].append(R[n])
                if t == 8: sj[0].append("s_waitcnt lgkmcnt(0)")
                if 8 <= t < 13:
                    sj[1].append(O_[2 * (t - 8)]); sj[3].append(O_[2 * (t - 8) + 1])
                if t == 14: sj[0] += cs_out
            if i == 5 and t == 4:
                sj[0] += [f"s_lshr_b32 s{sT}, s2, 3", f"s_lshl_b32 s{sT}, s{sT}, 15", f"v_lshlrev_b32 v{vT}, 7, v0"]
                for n in range(3):
                    sj[1 + n] += [f"s_add_u32 s{sT2}, s{sT}, {WS_WO + n * 0x100000}", ("vm", f"buffer_load_dword v{251+n}, v{vT}, {ws}, s{sT2} offen", "pf")]
            if t == 13 and i < NT - 1:
                sj[0] += [f"s_add_u32 s{sQI}, s{sQI}, 1536", f"s_cmp_eq_u32 s{sQI}, 12288", f"s_cselect_b32 s{sQI}, 0, s{sQI}"]
                sj[1] += [f"v_add_u32 v{vQA}, s{sQI}, v{vQ1}"]
                sj[2] += [f"v_add_u32 v{vT2}, s{sQI}, v{vQ2}"]
            if t == 14 and i < NT - 1:
                sj[2] += [f"ds_read_b128 {vr(Q,4)}, v{vQA}"]
                sj[3] += [f"ds_read_b64 {vr(Q+4,2)}, v{vT2}"]
            if t == 15 and i < NT - 1:
                sj[1] += ["s_waitcnt lgkmcnt(1)"]
                sj[2] += ["s_waitcnt lgkmcnt(0)"]
            mf = [None if first else pv(tp, 0), None if last else qk1(tn, tn & 1), None if last else qk2(tn, tn & 1), None if first else pv(tp, 1)]
            for g in range(4):
                side(sj[g])
                if mf[g]: k.i(mf[g])
                if g == 0:
                    if not first: k.i(cv(tp, 6)); k.i(cv(tp, 7))
                else:
                    k.i(cv(t, 2 * g - 2)); k.i(cv(t, 2 * g - 1))
                for r in range(4): k.i(ex(t, 4 * g + r))
    k.i(pv(15, 0)); k.i(cv(15, 6)); k.i(cv(15, 7)); k.i(pv(15, 1))
    def final_setup():
        k.i(f"""v_and_b32 v{vT}, 31, v{vL}
        v_lshrrev_b32 v{vT2}, 5, v{vL}
        v_mul_u32_u24 v{vT}, 20, v{vT}
        v_lshl_add_u32 v{vT}, v{vT2}, 2, v{vT}        ; f0
        v_lshrrev_b32 v{vT2}, 3, v{vT}
        v_and_b32 v{vT}, 4, v{vT}
        v_lshlrev_b32 v{vT}, 1, v{vT}
        v_lshl_add_u32 v{vQ1}, v{vT2}, 8, v{vT}
        v_and_b32 v{vT}, 0x7f000000, v{vHM}
        v_or_b32 v{vQ2}, v{vQ1}, v{vT}
        s_lshl_b32 s{sT}, s{sW}, 1
        s_add_u32 s{sT}, s{sT}, s{sTOKB}
        s_lshr_b32 s{sT2}, s{sT}, 4
        s_mul_i32 s{sT2}, s{sT2}, 20480
        s_and_b32 s{sT}, s{sT}, 15
        s_lshl_b32 s{sT}, s{sT}, 4
        s_add_u32 s{sT2}, s{sT2}, s{sT}
        s_add_u32 s{sKV}, s{sT2}, {WS_O}""")
        for u in range(4):
            k.i(f"""s_sub_u32 s{sT}, s{sW}, {u}
            s_and_b32 s{sT}, s{sT}, 3
            s_mul_i32 s{sT}, s{sT}, 6144
            s_add_u32 s{sT}, s{sT}, {u*24576}
            v_add_u32 v{S[0]+u}, s{sT}, v{vK1}""")
    final_setup()
    for q in range(3): k.i(f"ds_write_b128 v{vOSL}, {vr(OB+4*q,4)} offset:{7*3072+q*1024}")
    k.label("K2_FINAL")
    k.i("""s_waitcnt lgkmcnt(0)
    s_barrier""")
    for tk in range(2):
        for u in range(4):
            for q in range(3):
                k.i(f"ds_read_b128 {vr(RB+48*tk+12*u+4*q,4)}, v{S[0]+u} offset:{tk*3072+q*1024}")
        if tk == 0: k.i("s_waitcnt lgkmcnt(0)")
    for tk in range(2):
        b = RB + 48 * tk
        if tk == 1: k.i("s_waitcnt lgkmcnt(0)")
        for j in range(0, 12, 2):
            k.i(f"v_pk_add_f32 {vr(b+j,2)}, {vr(b+j,2)}, {vr(b+12+j,2)}")
            k.i(f"v_pk_add_f32 {vr(b+24+j,2)}, {vr(b+24+j,2)}, {vr(b+36+j,2)}")
        for j in range(0, 12, 2):
            k.i(f"v_pk_add_f32 {vr(b+j,2)}, {vr(b+j,2)}, {vr(b+24+j,2)}")
        k.i(f"""v_mov_b32 v{b+12}, v{b+8}
        v_mov_b32 v{b+13}, v{b+8}
        v_permlane32_swap_b32 v{b+12}, v{b+13}
        v_rcp_f32 v{b+12}, v{b+13}""")
        for j in range(0, 12, 2):
            k.i(f"v_pk_mul_f32 {vr(b+j,2)}, {vr(b+j,2)}, {vr(b+12,2)} op_sel_hi:[1,0]")
        for j in range(6):
            k.i(f"v_cvt_pk_bf16_f32 v{b+14+j}, v{b+2*j}, v{b+2*j+1}")
        for q in range(3):
            k.i(f"buffer_store_dwordx2 {vr(b+14+2*q,2)}, v{vQ2 if q == 2 else vQ1}, {ws}, s{sKV} offen offset:{q*256+tk*16}")
    k.label("K2_END")
    k.i("s_endpgm")
    k.label("HOT_END")
    k.label("K2_FALLBACK")
    vM = FLG
    k.i("s_nop 7\ns_nop 7")
    for grp in prep_issue:
        for it in grp: k.i(it[1] if isinstance(it, tuple) else it)
    k.i("s_waitcnt vmcnt(0) lgkmcnt(0)")
    for it in prep_reads(): k.i(it)
    k.i("s_waitcnt lgkmcnt(0)")
    for it in prep_out() + cs_out: k.i(it[1] if isinstance(it, tuple) else it)
    k.i(f"""v_not_b32 v{vPD}, v{vHM}
    s_lshl_b32 s{sT}, s{sW}, 8
    s_add_u32 s{sT}, s{sT}, {MX}
    v_lshlrev_b32 v{vPR}, 2, v{vL}
    v_add_u32 v{vQA}, s{sT}, v{vPR}
    v_add_u32 v{vPR}, {MX}, v{vPR}
    s_mov_b32 s{sQI}, 0""")
    def read_q():
        k.i(f"""s_mul_i32 s{sT}, s{sQI}, 1536
        v_add_u32 v{vT}, s{sT}, v{vQ1}
        v_add_u32 v{vT2}, s{sT}, v{vQ2}
        ds_read_b128 {vr(Q,4)}, v{vT}
        ds_read_b64 {vr(Q+4,2)}, v{vT2}
        s_waitcnt lgkmcnt(0)
        v_and_b32 v{Q+4}, v{Q+4}, v{vPD}""")
    k.label("K2_FB1")
    read_q()
    k.i(f"v_mov_b32 v{vM}, 0xff800000")
    for t in range(16):
        k.i(qk1(t, 0)); k.i(qk2(t, 0))
        for j in range(8): k.i(f"v_max3_f32 v{vM}, v{S[0]+2*j}, v{S[0]+2*j+1}, v{vM}")
    k.i(f"""v_mov_b32 v{vT}, v{vM}
    v_permlane32_swap_b32 v{vM}, v{vT}
    v_max_f32 v{vM}, v{vM}, v{vT}
    s_lshl_b32 s{sT}, s{sQI}, 10
    v_add_u32 v{vT}, s{sT}, v{vQA}
    ds_write_b32 v{vT}, v{vM}
    s_add_u32 s{sQI}, s{sQI}, 1
    s_cmp_lt_u32 s{sQI}, 8
    s_cbranch_scc1 K2_FB1
    s_waitcnt lgkmcnt(0)
    s_barrier
    s_mov_b32 s{sQI}, 0""")
    k.label("K2_FB2")
    k.i(f"""s_lshl_b32 s{sT}, s{sQI}, 10
    v_add_u32 v{vT}, s{sT}, v{vPR}
    ds_read_b32 v{vM}, v{vT}
    ds_read_b32 v{vM+1}, v{vT} offset:256
    ds_read_b32 v{vM+2}, v{vT} offset:512
    ds_read_b32 v{vM+3}, v{vT} offset:768""")
    read_q()
    k.i(f"""v_max3_f32 v{vM}, v{vM}, v{vM+1}, v{vM+2}
    v_max_f32 v{vM}, v{vM}, v{vM+3}""")
    for t in range(16):
        k.i(qk1(t, t & 1)); k.i(qk2(t, t & 1))
        for r in range(16): k.i(f"v_sub_f32 v{S[t&1]+r}, v{S[t&1]+r}, v{vM}")
        for r in range(16): k.i(ex(t, r))
        for j in range(8): k.i(cv(t, j))
        k.i(pv(t, 0)); k.i(pv(t, 1))
    k.i(f"""s_lshl_b32 s{sT}, s{sW}, 1
    s_sub_u32 s{sT}, s{sQI}, s{sT}
    s_and_b32 s{sT}, s{sT}, 7
    s_mul_i32 s{sT}, s{sT}, 3072
    v_add_u32 v{vT}, s{sT}, v{vOSL}""")
    for q in range(3): k.i(f"ds_write_b128 v{vT}, {vr(OB+4*q,4)} offset:{q*1024}")
    k.i(f"""s_add_u32 s{sQI}, s{sQI}, 1
    s_cmp_lt_u32 s{sQI}, 8
    s_cbranch_scc1 K2_FB2""")
    final_setup()
    k.i("s_branch K2_FINAL")
    return k, LDS
def blocks_scalar(k, sC, NS, sA, sL, sH, sT):
    k.i(f"""s_mul_i32 s{sT}, s{sC}, {NS}
    s_add_u32 s{sA}, s{sT}, 1
    s_lshr_b32 s{sA}, s{sA}, 1
    s_lshr_b32 s{sL}, s{sT}, 1
    s_add_u32 s{sT}, s{sL}, {NS//2}
    s_and_b32 s{sH}, s{sC}, 1
    s_cselect_b32 s{sL}, s{sL}, s{sT}""")

def gemm_chunk(k, frs, FB, NFB=4):
    n = len(frs)
    D = NFB - 1
    def rd(f):
        k.i(f"ds_read_b128 {vr(FB+4*(f%NFB),4)}, v{frs[f][0]} offset:{frs[f][1]}")
    for f in range(min(D, n)): rd(f)
    for f in range(n):
        if f + D < n: rd(f + D)
        k.i(f"s_waitcnt lgkmcnt({min(D, n-1-f)})")
        for m in frs[f][2]: k.i(m.format(w=vr(FB+4*(f%NFB),4)))

def gen_k35(which):
    k3 = which == 3
    k = Kern("k3_wo_kernel" if k3 else "k5_w2_kernel")
    P = "K3" if k3 else "K5"
    vm = VM(k)
    KS = 20 if k3 else 54
    NCH = (KS + 3) // 4
    RING = 5 if k3 else 7
    AB, WB = (WS_O, WS_WO) if k3 else (WS_HH, WS_W2)
    XS, WS, BS = 16, 28, 20
    sW, sCB, sTB, sT, sT2, sA, sL, sH, sAO, sWO, sLB = 32, 33, 34, 35, 36, 37, 38, 39, 40, 41, 42
    vL, vT, vT2, vT3, vL16, vRM = 1, 2, 3, 4, 5, 6
    vR = 7
    RES = 12
    BIA = 22
    ACC = 32
    FB = 52
    AF = 76
    if k3:
        k.i("""s_load_dwordx2 s[12:13], s[0:1], 96
        s_load_dwordx2 s[4:5], s[0:1], 0""")
    else:
        k.i("""s_load_dwordx2 s[12:13], s[0:1], 96
        s_load_dwordx4 s[4:7], s[0:1], 72""")
    k.i(f"""s_cmp_ge_u32 s2, 256
    s_cbranch_scc1 {P}_END""")
    code_prefetch(k, vT, 10, 14, f"{P}_END", 1); vm.q.append("code")
    k.i(f"""v_lshrrev_b32 v{vT}, 6, v0
    v_and_b32 v{vL}, 63, v0
    v_readfirstlane_b32 s{sW}, v{vT}
    s_and_b32 s{sT}, s2, 7
    s_lshr_b32 s{sT2}, s2, 3
    s_and_b32 s{sCB}, s{sT2}, 7
    s_lshr_b32 s{sT2}, s{sT2}, 3
    s_lshl_b32 s{sT}, s{sT}, 2
    s_add_u32 s{sTB}, s{sT}, s{sT2}
    s_lshl_b32 s{sTB}, s{sTB}, 2
    s_add_u32 s{sTB}, s{sTB}, s{sW}
    v_lshlrev_b32 v{vL16}, 4, v{vL}
    s_mul_i32 s{sAO}, s{sTB}, {KS*1024}
    s_add_u32 s{sAO}, s{sAO}, {AB}
    s_mul_i32 s{sWO}, s{sCB}, {KS*5*1024}
    s_lshl_b32 s{sLB}, s{sW}, 10
    s_add_u32 s{sWO}, s{sWO}, s{sLB}
    s_add_u32 s{sWO}, s{sWO}, {WB}
    v_and_b32 v{vT}, 15, v{vL}
    v_lshrrev_b32 v{vT2}, 4, v{vL}
    v_mul_u32_u24 v{vRM}, 1280, v{vT}
    v_lshl_add_u32 v{vRM}, v{vT2}, 4, v{vRM}
    v_lshlrev_b32 v{vT3}, 4, v{vT2}""")
    blocks_scalar(k, sCB, 5, sA, sL, sH, sT)
    k.i("s_waitcnt lgkmcnt(0)")
    srd(k, WS, 12, WS_END)
    ws = f"s[{WS}:{WS+3}]"
    def issue(c):
        nks = min(4, KS - 4 * c)
        slot = c % RING
        npc = (nks * 5 + 3) // 4
        for j in range(npc):
            k.i(f"s_add_u32 m0, s{sLB}, {slot*20480 + j*4096}")
            k.i(f"s_add_u32 s{sT}, s{sWO}, {c*20480 + j*4096}")
            vm.issue(f"buffer_load_dwordx4 v{vL16}, {ws}, s{sT} offen lds", ("c", c))
        k.i(f"s_add_u32 s{sT}, s{sAO}, {c*4096}")
        for j in range(nks):
            vm.issue(f"buffer_load_dwordx4 {vr(AF+16*slot+4*j,4)}, v{vL16}, {ws}, s{sT} offen offset:{j*1024}", ("c", c))
    PRE = min(NCH, RING if k3 else RING - 1)
    for c in range(PRE): issue(c)
    k.i(f"""s_mul_i32 s{sT}, s{sTB}, 20480
    s_lshl_b32 s43, s{sA}, 6
    s_lshl_b32 s44, s{sL}, 6
    s_lshl_b32 s{sT2}, s{sH}, 3
    s_add_u32 s44, s44, s{sT2}
    s_lshl_b32 s45, s{sA}, 10
    s_lshl_b32 s46, s{sL}, 10
    s_add_u32 s46, s46, s{sT2}
    s_add_u32 s45, s45, s{sT}
    s_add_u32 s46, s46, s{sT}
    s_add_u32 s45, s45, {WS_H}
    s_add_u32 s46, s46, {WS_H}""")
    if k3:
        srd(k, XS, 4, XB)
        k.i(f"""s_add_u32 s43, s43, s{sT}
        s_add_u32 s44, s44, s{sT}""")
        xs = f"s[{XS}:{XS+3}]"
        vm.issue(f"buffer_load_dwordx4 {vr(RES,4)}, v{vRM}, {xs}, s43 offen", "res")
        vm.issue(f"buffer_load_dwordx4 {vr(RES+4,4)}, v{vRM}, {xs}, s43 offen offset:64", "res")
        vm.issue(f"buffer_load_dwordx2 {vr(RES+8,2)}, v{vRM}, {xs}, s44 offen", "res")
    else:
        srd(k, BS, 4, 1280)
        srd(k, XS, 6, XB)
        bs = f"s[{BS}:{BS+3}]"
        vm.issue(f"buffer_load_dwordx4 {vr(RES,4)}, v{vL16}, {ws}, s45 offen", "res")
        vm.issue(f"buffer_load_dwordx4 {vr(RES+4,4)}, v{vL16}, {ws}, s45 offen offset:1024", "res")
        vm.issue(f"buffer_load_dwordx2 {vr(RES+8,2)}, v{vL16}, {ws}, s46 offen", "res")
        vm.issue(f"buffer_load_dwordx4 {vr(BIA,4)}, v{vT3}, {bs}, s43 offen", "res")
        vm.issue(f"buffer_load_dwordx4 {vr(BIA+4,4)}, v{vT3}, {bs}, s43 offen offset:64", "res")
        vm.issue(f"buffer_load_dwordx2 {vr(BIA+8,2)}, v{vT3}, {bs}, s44 offen", "res")
        k.i(f"""s_add_u32 s43, s43, s{sT}
        s_add_u32 s44, s44, s{sT}""")
    k.i(f"""v_mov_b32 v{vR}, v{vL16}
    v_add_u32 v{vR+1}, 61440, v{vL16}
    v_add_u32 v{vR+2}, 122880, v{vL16}""")
    for c in range(NCH):
        vm.wait(("c", c))
        k.i("s_barrier")
        if not k3 and c + PRE < NCH: issue(c + PRE)
        slot = c % RING
        frs = []
        for j in range(min(4, KS - 4 * c)):
            for s in range(5):
                off = slot * 20480 + (j * 5 + s) * 1024
                cin = "0" if (c == 0 and j == 0) else vr(ACC+4*s, 4)
                frs.append((vR + off // 61440, off % 61440,
                            [f"v_mfma_f32_16x16x32_bf16 {vr(ACC+4*s,4)}, {{w}}, {vr(AF+16*slot+4*j,4)}, {cin}"]))
        gemm_chunk(k, frs, FB, 6)
    vm.wait("res")
    U = FB
    for j in range(10):
        k.i(f"""v_lshlrev_b32 v{U+2*j}, 16, v{RES+j}
        v_and_b32 v{U+2*j+1}, 0xffff0000, v{RES+j}""")
    if not k3:
        for j in range(10):
            k.i(f"""v_lshlrev_b32 v{AF+2*j}, 16, v{BIA+j}
            v_and_b32 v{AF+2*j+1}, 0xffff0000, v{BIA+j}""")
        for j in range(10):
            k.i(f"v_pk_add_f32 {vr(U+2*j,2)}, {vr(U+2*j,2)}, {vr(AF+2*j,2)}")
    for j in range(10):
        k.i(f"v_pk_add_f32 {vr(ACC+2*j,2)}, {vr(ACC+2*j,2)}, {vr(U+2*j,2)}")
    for j in range(10):
        k.i(f"v_cvt_pk_bf16_f32 v{RES+j}, v{ACC+2*j}, v{ACC+2*j+1}")
    if k3:
        k.i(f"""buffer_store_dwordx4 {vr(RES,4)}, v{vL16}, {ws}, s45 offen
        buffer_store_dwordx4 {vr(RES+4,4)}, v{vL16}, {ws}, s45 offen offset:1024
        buffer_store_dwordx2 {vr(RES+8,2)}, v{vL16}, {ws}, s46 offen
        v_mov_b32 v{BIA}, 0
        v_mov_b32 v{BIA+1}, 0""")
        for j in range(10):
            k.i(f"""v_dot2c_f32_bf16 v{BIA}, {ONES}, v{RES+j}
            v_dot2c_f32_bf16 v{BIA+1}, v{RES+j}, v{RES+j}""")
        k.i(f"""v_and_b32 v{vT3}, 15, v{vL}
        v_lshlrev_b32 v{vT3}, 6, v{vT3}
        s_lshl_b32 s{sT}, s{sTB}, 10
        s_lshl_b32 s{sT2}, s{sCB}, 3
        s_add_u32 s{sT}, s{sT}, s{sT2}
        s_add_u32 s{sT}, s{sT}, {WS_ST}""")
        xsum_g(k, BIA, vT); xsum_g(k, BIA + 1, vT2)
        k.i(f"buffer_store_dwordx2 {vr(BIA,2)}, v{vT3}, {ws}, s{sT} offen")
    else:
        xs = f"s[{XS}:{XS+3}]"
        k.i(f"""buffer_store_dwordx4 {vr(RES,4)}, v{vRM}, {xs}, s43 offen
        buffer_store_dwordx4 {vr(RES+4,4)}, v{vRM}, {xs}, s43 offen offset:64
        buffer_store_dwordx2 {vr(RES+8,2)}, v{vRM}, {xs}, s44 offen""")
    k.label(f"{P}_END")
    k.i("s_endpgm")
    return k, RING * 20480

def gen_k4():
    k = Kern("k4_w1_kernel")
    vm = VM(k)
    TAB = 143360
    WS, BS = 28, 20
    sW, sC, sTB, sT, sT2, sA, sL, sH, sAO, sWO, sLB = 32, 33, 34, 35, 36, 37, 38, 39, 40, 41, 42
    vL, vT, vT2, vT3, vL16 = 1, 2, 3, 4, 5
    vR = 6
    ST = 12
    CP = 20
    ACC = 28
    FB = 84
    k.i("""s_load_dwordx2 s[12:13], s[0:1], 96
    s_load_dwordx2 s[4:5], s[0:1], 56
    s_cmp_ge_u32 s2, 256
    s_cbranch_scc1 K4_END""")
    code_prefetch(k, vT, 10, 14, "K4_END", 1); vm.q.append("code")
    k.i(f"""v_lshrrev_b32 v{vT}, 6, v0
    v_and_b32 v{vL}, 63, v0
    v_readfirstlane_b32 s{sW}, v{vT}
    s_and_b32 s{sT}, s2, 7
    s_lshr_b32 s{sT2}, s2, 3
    s_and_b32 s{sC}, s{sT2}, 15
    s_lshr_b32 s{sT2}, s{sT2}, 4
    s_lshl_b32 s{sT}, s{sT}, 1
    s_add_u32 s{sTB}, s{sT}, s{sT2}
    s_lshl_b32 s{sTB}, s{sTB}, 2
    s_add_u32 s{sTB}, s{sTB}, s{sW}
    s_lshl_b32 s{sTB}, s{sTB}, 1
    v_lshlrev_b32 v{vL16}, 4, v{vL}
    s_mul_i32 s{sAO}, s{sTB}, 20480
    s_add_u32 s{sAO}, s{sAO}, {WS_H}
    s_mul_i32 s{sWO}, s{sC}, {20*7*1024}
    s_lshl_b32 s{sLB}, s{sW}, 10
    s_add_u32 s{sWO}, s{sWO}, s{sLB}
    s_add_u32 s{sWO}, s{sWO}, {WS_W1}""")
    blocks_scalar(k, sC, 7, sA, sL, sH, sT)
    k.i(f"""v_lshrrev_b32 v{vT}, 5, v0               ; pos/2
    v_add_u32 v{vT}, s{sA}, v{vT}
    v_bfe_u32 v{vT2}, v0, 4, 1
    v_mov_b32 v{vT3}, s{sL}
    v_cmp_lt_u32 vcc, 95, v0
    v_cndmask_b32 v{vT}, v{vT}, v{vT3}, vcc
    v_mov_b32 v{vT3}, s{sH}
    v_cndmask_b32 v{vT2}, v{vT2}, v{vT3}, vcc
    v_lshlrev_b32 v{vT}, 5, v{vT}
    v_lshl_add_u32 v{vT}, v{vT2}, 2, v{vT}
    v_bfe_u32 v{vT2}, v0, 2, 2
    v_lshl_add_u32 v{vT}, v{vT2}, 3, v{vT}
    v_and_b32 v{vT2}, 3, v0
    v_add_lshl_u32 v{vT}, v{vT}, v{vT2}, 1
    v_lshlrev_b32 v{vT2}, 2, v0
    v_and_b32 v{vT3}, 15, v{vL}
    v_lshlrev_b32 v{vT3}, 6, v{vT3}
    v_and_b32 v11, 48, v{vL}
    v_add_u32 v{vT3}, v{vT3}, v11
    s_mul_i32 s43, s{sC}, 448
    s_add_u32 s43, s43, {WS_CS}
    s_add_u32 s44, s43, 14336
    s_lshl_b32 s45, s{sTB}, 10
    s_add_u32 s45, s45, {WS_ST}
    s_waitcnt lgkmcnt(0)""")
    srd(k, WS, 12, WS_END)
    srd(k, BS, 4, 3456)
    ws = f"s[{WS}:{WS+3}]"
    def issue(c):
        for j in range(7):
            k.i(f"s_add_u32 m0, s{sLB}, {c*28672 + j*4096}")
            k.i(f"s_add_u32 s{sT}, s{sWO}, {c*28672 + j*4096}")
            vm.issue(f"buffer_load_dwordx4 v{vL16}, {ws}, s{sT} offen lds", ("c", c))
        for m in range(2):
            k.i(f"s_add_u32 s{sT}, s{sAO}, {m*20480 + c*4096}")
            for j in range(4):
                vm.issue(f"buffer_load_dwordx4 {ar(80*m+16*c+4*j,4)}, v{vL16}, {ws}, s{sT} offen offset:{j*1024}", ("c", c))
    issue(0)
    k.i(f"s_add_u32 s{sT}, s43, 7168")
    k.i(f"s_add_u32 s{sT2}, s44, 7168")
    vm.issue(f"buffer_load_dword v{CP}, v{vT2}, {ws}, s43 offen", "tab")
    vm.issue(f"buffer_load_dword v{CP+1}, v{vT2}, {ws}, s{sT} offen", "tab")
    vm.issue(f"buffer_load_dword v{CP+2}, v{vT2}, {ws}, s44 offen", "tab")
    vm.issue(f"buffer_load_dword v{CP+3}, v{vT2}, {ws}, s{sT2} offen", "tab")
    vm.issue(f"buffer_load_ushort v{CP+4}, v{vT}, s[{BS}:{BS+3}], 0 offen", "tab")
    vm.issue(f"buffer_load_dwordx4 {vr(ST,4)}, v{vT3}, {ws}, s45 offen", "tab")
    vm.issue(f"buffer_load_dwordx4 {vr(ST+4,4)}, v{vT3}, {ws}, s45 offen offset:1024", "tab")
    issue(1); issue(2)
    k.i(f"""v_mov_b32 v{vR}, v{vL16}
    v_add_u32 v{vR+1}, 57344, v{vL16}
    v_add_u32 v{vR+2}, 114688, v{vL16}""")
    for c in range(5):
        vm.wait(("c", c))
        if c == 1:
            k.i(f"""v_add_f32 v{CP}, v{CP}, v{CP+1}
            v_add_f32 v{CP+2}, v{CP+2}, v{CP+3}
            v_lshlrev_b32 v{CP+4}, 16, v{CP+4}
            v_add_f32 v{CP}, v{CP}, v{CP+2}
            v_add_u32 v{vT2}, {TAB}, v{vT2}
            ds_write_b32 v{vT2}, v{CP}
            ds_write_b32 v{vT2}, v{CP+4} offset:1024""")
            for m in range(2):
                b = ST + 4 * m
                k.i(f"""v_add_f32 v{b}, v{b}, v{b+2}
                v_add_f32 v{b+1}, v{b+1}, v{b+3}""")
                xsum_g(k, b, vT); xsum_g(k, b + 1, vT3)
                k.i(f"""v_mul_f32 v{b}, {fhex(1/640)}, v{b}           ; mean
                v_mul_f32 v{vT}, v{b}, v{b}
                v_mov_b32 v{vT3}, {fhex(1/640)}
                v_fma_f32 v{vT}, v{b+1}, v{vT3}, -v{vT}
                v_max_f32 v{vT}, 0, v{vT}                 ; var
                v_add_f32 v{b+1}, {fhex(EPS)}, v{vT}
                v_rcp_f32 v{b+2}, v{b+1}
                v_rsq_f32 v{b+3}, v{b+1}
                v_mov_b32 v{vT3}, {fhex(EPS)}
                v_fma_f32 v{vT}, v{vT}, v{b+2}, v{vT3}
                v_rsq_f32 v{vT}, v{vT}
                s_nop 0
                v_mul_f32 v{b+2}, v{b+3}, v{vT}           ; r
                v_mul_f32 v{b}, v{b}, v{b+2}              ; mean*r""")
            k.i("s_waitcnt lgkmcnt(0)")
        k.i("s_barrier")
        if c + 3 < 5: issue(c + 3)
        frs = []
        for j in range(4):
            for s in range(7):
                off = c * 28672 + (j * 7 + s) * 1024
                ms = []
                for m in range(2):
                    a = ACC + 28 * m + 4 * s
                    cin = "0" if (c == 0 and j == 0) else vr(a, 4)
                    ms.append(f"v_mfma_f32_16x16x32_bf16 {vr(a,4)}, {{w}}, {ar(80*m+16*c+4*j,4)}, {cin}")
                frs.append((vR + off // 57344, off % 57344, ms))
        gemm_chunk(k, frs, FB, 4)
    TC, TBI, TMP = 100, 128, 156
    k.i(f"v_add_u32 v11, {TAB}, v11")
    for s in range(7):
        k.i(f"ds_read_b128 {vr(TC+4*s,4)}, v11 offset:{s*64}")
        k.i(f"ds_read_b128 {vr(TBI+4*s,4)}, v11 offset:{1024+s*64}")
    C0 = -2.0 * math.log2(math.e) * math.sqrt(2.0 / math.pi)
    C1 = C0 * 0.044715
    k.i(f"""s_mov_b32 s48, {fhex(C1)}
    s_mov_b32 s49, {fhex(C1)}
    v_mov_b32 v{vT2}, {fhex(C0)}
    v_mov_b32 v{vT}, {fhex(C0)}
    s_mul_i32 s{sT}, s{sTB}, {54*1024}
    s_add_u32 s{sT}, s{sT}, {WS_HH}
    s_lshl_b32 s45, s{sA}, 10
    s_add_u32 s45, s45, s{sT}
    s_lshl_b32 s46, s{sL}, 10
    s_add_u32 s46, s46, s{sT}
    s_lshl_b32 s{sT2}, s{sH}, 3
    s_add_u32 s46, s46, s{sT2}
    s_add_u32 s43, s45, {54*1024}
    s_add_u32 s44, s46, {54*1024}
    s_waitcnt lgkmcnt(0)""")
    assert vT == 2 and vT2 == 3
    def gelu(m, subs, out):
        b = ST + 4 * m
        prs = [(s, h) for s in subs for h in range(2)]
        def A(p): return vr(ACC + 28*m + 4*p[0] + 2*p[1], 2)
        def T(i, j=0): return TMP + 2 * i + 8 * j
        for i, p in enumerate(prs):
            k.i(f"v_pk_fma_f32 {vr(T(i),2)}, {vr(TC+4*p[0]+2*p[1],2)}, {vr(b,2)}, {vr(TBI+4*p[0]+2*p[1],2)} op_sel_hi:[1,0,1] neg_lo:[0,1,0] neg_hi:[0,1,0]")
        for i, p in enumerate(prs):
            k.i(f"v_pk_fma_f32 {A(p)}, {A(p)}, {vr(b+2,2)}, {vr(T(i),2)} op_sel_hi:[1,0,1]")
        for i, p in enumerate(prs):
            k.i(f"v_pk_mul_f32 {vr(T(i),2)}, {A(p)}, {A(p)}")
        for i, p in enumerate(prs):
            k.i(f"v_pk_fma_f32 {vr(T(i),2)}, {vr(T(i),2)}, s[48:49], v[2:3]")
        for i, p in enumerate(prs):
            k.i(f"v_pk_mul_f32 {vr(T(i),2)}, {vr(T(i),2)}, {A(p)}")
        for i, p in enumerate(prs):
            k.i(f"v_exp_f32 v{T(i)}, v{T(i)}\nv_exp_f32 v{T(i)+1}, v{T(i)+1}")
        for i, p in enumerate(prs):
            k.i(f"v_pk_add_f32 {vr(T(i),2)}, {vr(T(i),2)}, 1.0 op_sel_hi:[1,0]")
        for i, p in enumerate(prs):
            k.i(f"v_rcp_f32 v{T(i)}, v{T(i)}\nv_rcp_f32 v{T(i)+1}, v{T(i)+1}")
        for i, p in enumerate(prs):
            k.i(f"v_pk_mul_f32 {vr(T(i),2)}, {vr(T(i),2)}, {A(p)}")
        for i, p in enumerate(prs):
            k.i(f"v_cvt_pk_bf16_f32 v{out+i}, v{T(i)}, v{T(i)+1}")
    OUT = 164
    n = 0
    for m in range(2):
        gelu(m, [6], OUT + n); k.i(f"buffer_store_dwordx2 {vr(OUT+n,2)}, v{vL16}, {ws}, s{46 if m == 0 else 44} offen"); n += 4
        gelu(m, [0, 1], OUT + n); k.i(f"buffer_store_dwordx4 {vr(OUT+n,4)}, v{vL16}, {ws}, s{45 if m == 0 else 43} offen"); n += 4
    k.i(f"""s_cmp_eq_u32 s{sC}, 15
    s_cbranch_scc1 K4_END ; noflush""")
    for m in range(2):
        for pr in (1, 2):
            gelu(m, [2 * pr, 2 * pr + 1], OUT + n)
            k.i(f"buffer_store_dwordx4 {vr(OUT+n,4)}, v{vL16}, {ws}, s{45 if m == 0 else 43} offen offset:{pr*1024}"); n += 4
    k.label("K4_END")
    k.i("s_endpgm")
    return k, TAB + 2048

def main(out):
    ks = {1: gen_k1(), 2: gen_k2(), 3: gen_k35(3), 4: gen_k4(), 5: gen_k35(5)}
    hdr = open("cdna_kernels/" + NAME + ".s.ref").read().split("; Override launch")[0]
    for n in (1, 2, 3, 4, 5):
        hdr += f"; @launch kernel={ks[n][0].name} grid=(256,1,1) block=(256,1,1) lds={ks[n][1]}\n"
    txt = hdr + '.amdgcn_target "amdgcn-amd-amdhsa--gfx950"\n'
    kds = ""
    for n in (1, 3, 4, 5, 2):
        code, kd = ks[n][0].finish(verbose="-v" in sys.argv)
        txt += code; kds += kd
        kk = ks[n][0]
        print(f"{kk.name}: {len(kk.ins)} lines, vmax {kk.vmax} amax {kk.amax} smax {kk.smax} nfv {kk.nfv} nops {kk.nops} lds {ks[n][1]}")
    open(out, "w").write(txt + kds)

if __name__ == "__main__":
    main(sys.argv[1] if len(sys.argv) > 1 and not sys.argv[1].startswith("-") else "cdna_kernels/" + NAME + ".s")
```

```python
import sys, re, subprocess
NAME = "sequential_preLN__grouped_kv_mqa__mixer_channel_mlp__prompt"
src, outp = sys.argv[1], sys.argv[2]
js = [int(x) for x in sys.argv[3:]]
s = open(src).read()
base = int(re.findall(r's_add_u32 s3, s3, (\d+)', s)[-1])
lines = s.split("\n")
idx = [i for i, l in enumerate(lines) if l.startswith("; @launch")][0]
M = f"; @launch kernel={NAME}_kernel grid=(256,1,1) block=(256,1,1) lds=163840"
P = "; @launch kernel=post_kernel grid=(1,1,1) block=(64,1,1) lds=0"
def post(j):
    b = f"""
.text
.globl post_kernel
.p2align 8
.type post_kernel,@function
post_kernel:
    s_load_dwordx2 s[6:7], s[0:1], 96
    s_cmp_lg_u32 s2, 0
    s_cbranch_scc1 PE
    v_mul_u32_u24 v1, 768, v0
    v_add_u32 v1, {base}, v1
    s_waitcnt lgkmcnt(0)
    global_load_dword v2, v1, s[6:7]
    global_load_dword v3, v1, s[6:7] offset:{4*max(j,0)}
    s_waitcnt vmcnt(0)
    v_readfirstlane_b32 s20, v2
    s_nop 3
    v_subrev_u32 v2, s20, v2
    v_subrev_u32 v3, s20, v3
    s_mov_b32 s12, 0
    s_mov_b32 s13, 0
    s_mov_b32 s14, 0
RL:
    s_nop 3
    v_readlane_b32 s15, v2, s14
    v_readlane_b32 s16, v3, s14
    s_nop 3
    s_min_i32 s12, s12, s15
    s_max_i32 s13, s13, s16
    s_add_u32 s14, s14, 1
    s_cmp_lt_u32 s14, 64
    s_cbranch_scc1 RL
    s_sub_u32 s12, s13, s12
    s_min_u32 s12, s12, 10000
    s_mul_i32 s12, s12, {4 if j >= 0 else 0}
    s_memrealtime s[8:9]
    s_waitcnt lgkmcnt(0)
    s_add_u32 s12, s12, s8
SP:
    s_memrealtime s[8:9]
    s_waitcnt lgkmcnt(0)
    s_sub_u32 s10, s8, s12
    s_cmp_lt_i32 s10, 0
    s_cbranch_scc1 SP
PE:
    s_endpgm
.section .rodata,"a"
.p2align 6
.amdhsa_kernel post_kernel
  .amdhsa_next_free_vgpr 32
  .amdhsa_next_free_sgpr 48
  .amdhsa_accum_offset 32
  .amdhsa_group_segment_fixed_size 0
  .amdhsa_kernarg_size 104
  .amdhsa_user_sgpr_count 2
  .amdhsa_user_sgpr_kernarg_segment_ptr 1
  .amdhsa_system_sgpr_workgroup_id_x 1
.end_amdhsa_kernel
"""
    return b
for j in js:
    f = f"cdna_kernels/{outp}_{j if j >= 0 else 'z'}.s"
    open(f, "w").write("\n".join(lines[:idx] + [M, P] + lines[idx+1:]) + post(j))
    r = subprocess.run(["clang", "-x", "assembler", "-target", "amdgcn-amd-amdhsa", "-mcpu=gfx950", "-c", f, "-o", "x.o"])
    print(f, r.returncode)
```
